```python
import torch

def _softmax(x, axis=-1):
    return torch.softmax(x, dim=axis)
def _gelu(x):
    return torch.nn.functional.gelu(x, approximate="tanh")
def _silu(x):
    return torch.nn.functional.silu(x)
def _sigmoid(x):
    return torch.sigmoid(x)
def _layernorm(x, axis=-1, eps=1e-5):
    m = x.mean(dim=axis, keepdim=True)
    v = x.var(dim=axis, keepdim=True, unbiased=False)
    return (x - m) / torch.sqrt(v + eps)
def _scatter_add(tgt, idx, src, axis=0):
    return tgt.clone().index_add_(axis, idx, src)
def _segment_sum(src, seg, n):
    out = torch.zeros((n,) + src.shape[1:], dtype=src.dtype)
    return out.index_add_(0, seg, src)
def _pad(x, pw):
    flat = tuple(v for pair in reversed(pw) for v in pair)
    return torch.nn.functional.pad(x, flat)

kernel_name = 'interleave_layers__grouped_kv_mqa__glu_gated_reglu__prompt'

def setup_inputs():

    _w = (lambda a: (lambda t: t.to(torch.bfloat16) if t.is_floating_point() else t)(torch.as_tensor(a)))
    def _A_setup():
        B, S, D, H = 1, 2048, 512, 32
        Dh = D // H
        return {
            "x": _w((lambda *s: torch.randn(*s, dtype=torch.bfloat16) * 0.05)(B, S, D)),
            "wq": _w((lambda *s: torch.randn(*s, dtype=torch.bfloat16) * 0.05)(D, H * Dh)),
            "wk": _w((lambda *s: torch.randn(*s, dtype=torch.bfloat16) * 0.05)(D, Dh)),
            "wv": _w((lambda *s: torch.randn(*s, dtype=torch.bfloat16) * 0.05)(D, Dh)),
            "wo": _w((lambda *s: torch.randn(*s, dtype=torch.bfloat16) * 0.05)(H * Dh, D)),
        }
    _A_in = _A_setup()

    def _B_setup():
        B, S, D, F = 1, 2048, 512, 1792
        return {
            "x": _w((lambda *s: torch.randn(*s, dtype=torch.bfloat16) * 0.05)(B, S, D)),
            "W_gate": _w((lambda *s: torch.randn(*s, dtype=torch.bfloat16) * 0.4)(D, F) * (2.0 / D) ** 0.5),
            "W_up": _w((lambda *s: torch.randn(*s, dtype=torch.bfloat16) * 0.4)(D, F) * (2.0 / D) ** 0.5),
            "W_down": _w((lambda *s: torch.randn(*s, dtype=torch.bfloat16) * 0.4)(F, D) * (1.0 / F) ** 0.5),
        }
    _B_in = _B_setup()

    return {
        "A_x": _A_in["x"],
        "A_wq": _A_in["wq"],
        "A_wk": _A_in["wk"],
        "A_wv": _A_in["wv"],
        "A_wo": _A_in["wo"],
        "B_x": _B_in["x"],
        "B_W_gate": _B_in["W_gate"],
        "B_W_up": _B_in["W_up"],
        "B_W_down": _B_in["W_down"],
    }

def reference(A_x, A_wq, A_wk, A_wv, A_wo, B_x, B_W_gate, B_W_up, B_W_down):
    def _A_ref(x, wq, wk, wv, wo):
        B, S, D = x.shape
        H = 32
        Dh = D // H
        q = (lambda x, *d: x.permute(*d))((x @ wq).reshape(B, S, H, Dh), 0, 2, 1, 3)
        k = x @ wk
        v = x @ wv
        scores = torch.einsum("bhqd,bkd->bhqk", q, k) * (Dh ** -0.5)
        p = _softmax(scores, axis=-1)
        o = torch.einsum("bhqk,bkd->bhqd", p, v)
        return (lambda x, *d: x.permute(*d))(o, 0, 2, 1, 3).reshape(B, S, H * Dh) @ wo

    def _B_ref(x, W_gate, W_up, W_down):
        gate = torch.einsum("bsd,df->bsf", x, W_gate)
        up = torch.einsum("bsd,df->bsf", x, W_up)
        gate = gate * (lambda x, dt: x.to(dt))(gate > 0, gate.dtype)
        h = gate * up
        return torch.einsum("bsf,fd->bsd", h, W_down)

    x = A_x
    x = x + _A_ref(_layernorm(x, axis=-1), A_wq, A_wk, A_wv, A_wo)
    x = x + _B_ref(_layernorm(x, axis=-1), B_W_gate, B_W_up, B_W_down)
    x = x + _A_ref(_layernorm(x, axis=-1), A_wq, A_wk, A_wv, A_wo)
    x = x + _B_ref(_layernorm(x, axis=-1), B_W_gate, B_W_up, B_W_down)
    return x
```

```python
import json
from mblib import build
def body(lines, warm):
    s = """
    s_load_dwordx2 s[4:5], s[0:1], 8
    s_waitcnt lgkmcnt(0)
    s_mov_b32 s8, s4
    s_mov_b32 s9, s5
    s_mov_b32 s10, 0x100000
    s_mov_b32 s11, 0x20000
    v_lshrrev_b32 v1, 6, v0
    s_nop 1
    v_readfirstlane_b32 s20, v1
    s_lshl_b32 s21, s2, 4
    s_add_u32 s21, s21, s20
    s_lshl_b32 s21, s21, 3
    s_mov_b32 s24, 0
"""
    if warm:
        s += """
    s_getpc_b64 s[40:41]
    s_mov_b32 s44, s40
    s_mov_b32 s45, s41
    s_mov_b32 s46, %d
    s_mov_b32 s47, 0x20000
    v_lshlrev_b32 v2, 4, v0
""" % (len(lines)*8)
        for i in range(0, 8):
            s += f"    buffer_load_dwordx4 v[4:7], v2, s[44:47], 0 offen\n    v_add_u32 v2, 8192, v2\n"
        s += "    s_waitcnt vmcnt(0)\n"
    s += """
3:
    s_barrier
    s_memtime s[12:13]
    s_waitcnt lgkmcnt(0)
""" + "\n".join("    "+l for l in lines) + """
    s_memtime s[14:15]
    s_waitcnt lgkmcnt(0)
    s_sub_u32 s14, s14, s12
    v_mov_b32 v2, s14
    v_mov_b32 v3, s21
    v_and_b32 v4, 63, v0
    v_cmp_eq_u32 vcc, 0, v4
    s_and_saveexec_b64 s[16:17], vcc
    buffer_store_dword v2, v3, s[8:11], s24 offen
    s_mov_b64 exec, s[16:17]
    s_waitcnt vmcnt(0)
    s_add_u32 s24, s24, 4
    s_cmp_lg_u32 s24, 8
    s_cbranch_scc0 4f
    s_branch 3b
4:
    s_endpgm
"""
    return s
K=[];meta=[]
for warm in (False,True):
    for n in (512,2048,6000):
        K.append((f"fma{n}_{int(warm)}", body([f"v_fma_f32 v{32+i%32}, v{64+i%32}, v{64+(i+1)%32}, v{96+i%32}" for i in range(n)],warm),128,128)); meta.append((K[-1][0],n,n*4))
        K.append((f"exp{n}_{int(warm)}", body([f"v_exp_f32_e64 v{32+i%32}, v{64+i%32}" for i in range(n)],warm),128,128)); meta.append((K[-1][0],n,n*8))
        K.append((f"mfma{n}_{int(warm)}", body([f"v_mfma_f32_16x16x32_bf16 v[{32+4*(i%8)}:{35+4*(i%8)}], v[2:5], v[6:9], v[{32+4*(i%8)}:{35+4*(i%8)}]" for i in range(n)],warm),128,128)); meta.append((K[-1][0],n,n*16))
build(K,"ic")
json.dump(meta,open("ic.json","w"))
```

```python
import json
from mblib import build
def wrap(body, init, iters):
    return f"""
    s_load_dwordx2 s[4:5], s[0:1], 8
    s_load_dwordx2 s[6:7], s[0:1], 0
    s_waitcnt lgkmcnt(0)
    s_mov_b32 s8, s4
    s_mov_b32 s9, s5
    s_mov_b32 s10, 0x100000
    s_mov_b32 s11, 0x20000
    s_mov_b32 s40, s6
    s_mov_b32 s41, s7
    s_mov_b32 s42, 0x400000
    s_mov_b32 s43, 0x20000
    v_lshrrev_b32 v1, 6, v0
    s_nop 1
    v_readfirstlane_b32 s20, v1
    s_lshl_b32 s21, s2, 4
    s_add_u32 s21, s21, s20
    s_lshl_b32 s21, s21, 3
    v_lshlrev_b32 v2, 4, v0
""" + "".join(f"    buffer_load_dwordx4 v[{16+4*i}:{19+4*i}], v2, s[40:43], 0 offen\n    v_add_u32 v2, 8192, v2\n" for i in range(24)) + """
    s_waitcnt vmcnt(0)
    v_mov_b32 v10, 0xdddddddd
    v_and_b32 v11, 31, v0
    s_mov_b32 s28, 0xffff
    s_mov_b32 s29, 0xffff
""" + "".join(f"    v_mov_b32 v{112+i}, 0\n" for i in range(64)) + init + f"""
    s_mov_b32 s22, {iters}
    s_barrier
    s_memtime s[12:13]
    s_memrealtime s[24:25]
    s_waitcnt lgkmcnt(0)
.p2align 6
1:
{body}
    s_sub_u32 s22, s22, 1
    s_cmp_lg_u32 s22, 0
    s_cbranch_scc1 1b
    s_nop 15
    s_barrier
    s_memtime s[14:15]
    s_memrealtime s[26:27]
    s_waitcnt lgkmcnt(0)
    s_sub_u32 s14, s14, s12
    s_sub_u32 s26, s26, s24
    v_mov_b32 v2, s14
    v_mov_b32 v3, s26
    v_mov_b32 v4, s21
    v_and_b32 v5, 63, v0
    v_cmp_eq_u32 vcc, 0, v5
    s_and_saveexec_b64 s[16:17], vcc
    buffer_store_dwordx2 v[2:3], v4, s[8:11], 0 offen
    s_waitcnt vmcnt(0)
    s_endpgm
"""
def body(do_s=True, do_pv=True, do_exp=True, U=4, dense=False):
    l=[]
    for b in range(U):
        S=112+16*(b&1); Sn=112+16*((b+1)&1)
        K=20+4*((b+1)%8); V=52+8*(b%7)
        e=[f"v_exp_f32 v{S+i}, v{S+i}" if do_exp else f"v_mov_b32 v{S+i}, v{S+i}" for i in range(16)]
        if do_pv: l.append(f"v_smfmac_f32_32x32x32_bf16 v[144:159], v[{V+4}:{V+7}], v[{Sn+8}:{Sn+15}], v10")
        l+=e[0:5]
        if do_s: l.append(f"v_mfma_f32_32x32x16_bf16 v[{Sn}:{Sn+15}], v[{K}:{K+3}], v[16:19], 0")
        else: l += [f"v_mov_b32 v{Sn+i}, v{20+i}" for i in range(0)]
        l+=e[5:10]
        if do_pv: l.append(f"v_smfmac_f32_32x32x32_bf16 v[144:159], v[{V}:{V+3}], v[{S}:{S+7}], v10")
        l+=e[10:16]
        l.append("s_nop 1")
    return "\n".join("    "+x for x in l)
def vinit(mode):
    s=""
    if mode=="rand": return s
    s+="    v_cmp_le_u32 vcc, 16, v11\n"
    if mode=="ones": s+="    v_mov_b32 v12, 0x3f803f80\n"
    if mode=="zero":
        s+="    v_and_b32 v13, 27, v11\n    v_cmp_eq_u32 s[30:31], 16, v13\n    v_mov_b32 v13, 0x3f803f80\n    s_nop 1\n    v_cndmask_b32 v12, 0, v13, s[30:31]\n"
    s+="    s_nop 1\n"
    for i in range(60): s+=f"    v_cndmask_b32 v{52+i}, v{52+i}, v12, vcc\n"
    return s

def body_dense(U=4, cvt=True):
    l=[]
    for b in range(U):
        S=112+16*(b&1); Sn=112+16*((b+1)&1); P=160+8*(b&1); Pn=160+8*((b+1)&1)
        K=20+4*((b+1)%8); V=52+8*(b%7)
        e=[f"v_exp_f32 v{S+i}, v{S+i}" for i in range(16)]
        c=[f"v_cvt_pk_bf16_f32 v{P+i}, v{S+2*i}, v{S+2*i+1}" for i in range(8)] if cvt else []
        l.append(f"v_mfma_f32_32x32x16_bf16 v[144:159], v[{V+4}:{V+7}], v[{Pn+4}:{Pn+7}], v[144:159]")
        l+=e[0:6]
        l.append(f"v_mfma_f32_32x32x16_bf16 v[{Sn}:{Sn+15}], v[{K}:{K+3}], v[16:19], 0")
        l+=e[6:9]+c[0:4]+e[9:11]
        l.append(f"v_mfma_f32_32x32x16_bf16 v[144:159], v[{V}:{V+3}], v[{P}:{P+3}], v[144:159]")
        l+=e[11:16]+["s_nop 0"]+c[4:8]
        l.append("s_nop 1")
    return "\n".join("    "+x for x in l)
def body16(U=4):
    l=[]
    for b in range(U):
        S=112+16*(b&1); Sn=112+16*((b+1)&1)
        K=20+4*((b+1)%8); V=52+8*(b%7)
        e=[f"v_exp_f32 v{S+i}, v{S+i}" for i in range(16)]
        l.append(f"v_smfmac_f32_16x16x64_bf16 v[144:147], v[{V+4}:{V+7}], v[{Sn+8}:{Sn+15}], v10")
        l+=e[0:5]
        l.append(f"v_mfma_f32_32x32x16_bf16 v[{Sn}:{Sn+15}], v[{K}:{K+3}], v[16:19], 0")
        l+=e[5:10]
        l.append(f"v_smfmac_f32_16x16x64_bf16 v[148:151], v[{V}:{V+3}], v[{S}:{S+7}], v10")
        l+=e[10:16]
        l.append("s_nop 1")
    return "\n".join("    "+x for x in l)
K=[];meta=[]
def add(n,b,i,iters=32): K.append((n,wrap(b,i,iters),176,176)); meta.append((n,iters*4))
for it in (16,):
    add(f"full_zero_{it}", body(), vinit("zero"), it)
    add(f"dense_cvt_zero_{it}", body_dense(), vinit("zero"), it)
    add(f"dense_nocvt_zero_{it}", body_dense(cvt=False), vinit("zero"), it)
    add(f"smf16_{it}", body16(), vinit("rand"), it)
    add(f"full_zero_b_{it}", body(), vinit("zero"), it)
build(K,"pw2")
json.dump(meta,open("pw2.json","w"))
```

```python
import json
from mblib import build
def body(stride, pollmode, rounds=8, sleep=0):
    s = f"""
    s_load_dwordx2 s[4:5], s[0:1], 0
    s_load_dwordx2 s[6:7], s[0:1], 8
    s_load_dwordx2 s[36:37], s[0:1], 16
    s_waitcnt lgkmcnt(0)
    s_mov_b32 s8, s4
    s_mov_b32 s9, s5
    s_mov_b32 s10, 0x10000000
    s_mov_b32 s11, 0x20000
    s_mov_b32 s12, s6
    s_mov_b32 s13, s7
    s_mov_b32 s14, 0x100000
    s_mov_b32 s15, 0x20000
    s_mov_b32 s40, s36
    s_mov_b32 s41, s37
    s_mov_b32 s42, 0x100000
    s_mov_b32 s43, 0x20000
    s_and_b32 s16, s2, 7
    s_lshl_b32 s16, s16, 5
    s_lshr_b32 s17, s2, 3
    s_add_u32 s16, s16, s17
    v_lshrrev_b32 v1, 6, v0
    s_nop 1
    v_readfirstlane_b32 s20, v1
    v_and_b32 v0, 63, v0
    v_lshlrev_b32 v2, 3, v0
    s_lshr_b32 s19, s16, 2
    s_lshl_b32 s23, s19, 11
    s_mul_i32 s26, s19, {stride}
    v_mov_b32 v4, s26
    v_mov_b32 v5, 1
    v_mov_b32 v8, 1
    v_mov_b32 v9, 1
"""
    if pollmode == "wg":
        s += f"    v_mul_u32_u24 v3, {stride}, v0\n"
    else:
        s += f"    v_and_b32 v3, 7, v0\n    s_lshl_b32 s21, s20, 3\n    v_add_u32 v3, s21, v3\n    v_mul_u32_u24 v3, {stride}, v3\n"
    s += f"""
    s_mov_b32 s27, 0
3:
    s_memrealtime s[28:29]
    s_waitcnt lgkmcnt(0)
    s_mul_i32 s19, s27, 16384
    s_and_b32 s21, s16, 3
    s_or_b32 s21, s21, s20
    s_cmp_eq_u32 s21, 0
    s_cbranch_scc0 6f
    buffer_store_dwordx2 v[8:9], v2, s[8:11], s23 offen sc1
    s_waitcnt vmcnt(0)
    s_mov_b64 exec, 1
    buffer_store_dword v5, v4, s[40:43], s19 offen sc1
    s_mov_b64 exec, -1
6:
    s_mov_b32 s34, 20000
"""
    if pollmode == "wg": s += "    s_cmp_eq_u32 s20, 7\n    s_cbranch_scc0 5f\n"
    s += f"""
4:
    buffer_load_dword v6, v3, s[40:43], s19 offen sc1
    s_waitcnt vmcnt(0)
    v_cmp_ne_u32 vcc, 1, v6
    s_cbranch_vccz 5f
    {'s_sleep %d' % sleep if sleep else ''}
    s_sub_u32 s34, s34, 1
    s_cbranch_scc0 4b
5:
    s_barrier
    s_memrealtime s[30:31]
    s_waitcnt lgkmcnt(0)
    v_mov_b32 v16, s28
    v_mov_b32 v17, s30
    s_lshl_b32 s19, s27, 3
    s_lshl_b32 s22, s2, 8
    s_add_u32 s19, s19, s22
    v_mov_b32 v7, s19
    s_cmp_eq_u32 s20, 3
    s_cbranch_scc0 7f
    s_mov_b64 exec, 1
    buffer_store_dwordx2 v[16:17], v7, s[12:15], 0 offen
    s_mov_b64 exec, -1
7:
    s_add_u32 s23, s23, 0x100000
    s_add_u32 s27, s27, 1
    s_cmp_lg_u32 s27, {rounds}
    s_cbranch_scc1 3b
    s_waitcnt vmcnt(0)
    s_endpgm
"""
    return s
K=[]; meta=[]
for stride in (4,16,64,128,256):
    for pm in ("wg","wave"):
        for sl in (0,2):
            name=f"e2_s{stride}_{pm}_sl{sl}"
            K.append((name,body(stride,pm,sleep=sl),32,32)); meta.append((name,8,0))
build(K,"e2"); json.dump(meta,open("e2.json","w"))
```

```python
import json
from mblib import build
def body(stride, pollmode, rounds=8, sleep=0):
    s = f"""
    s_load_dwordx2 s[4:5], s[0:1], 0
    s_load_dwordx2 s[6:7], s[0:1], 8
    s_load_dwordx2 s[36:37], s[0:1], 16
    s_waitcnt lgkmcnt(0)
    s_mov_b32 s8, s4
    s_mov_b32 s9, s5
    s_mov_b32 s10, 0x10000000
    s_mov_b32 s11, 0x20000
    s_mov_b32 s12, s6
    s_mov_b32 s13, s7
    s_mov_b32 s14, 0x100000
    s_mov_b32 s15, 0x20000
    s_mov_b32 s40, s36
    s_mov_b32 s41, s37
    s_mov_b32 s42, 0x100000
    s_mov_b32 s43, 0x20000
    s_and_b32 s16, s2, 7
    s_lshl_b32 s16, s16, 5
    s_lshr_b32 s17, s2, 3
    s_add_u32 s16, s16, s17
    v_lshrrev_b32 v1, 6, v0
    s_nop 1
    v_readfirstlane_b32 s20, v1
    v_and_b32 v0, 63, v0
    v_lshlrev_b32 v2, 3, v0
    s_lshr_b32 s19, s16, 2
    s_lshl_b32 s23, s19, 11
    s_mul_i32 s26, s19, {stride}
    v_mov_b32 v4, s26
    v_mov_b32 v5, 1
    v_mov_b32 v8, 1
    v_mov_b32 v9, 1
"""
    if pollmode == "wg":
        s += f"    v_mul_u32_u24 v3, {stride}, v0\n"
    else:
        s += f"    v_and_b32 v3, 7, v0\n    s_lshl_b32 s21, s20, 3\n    v_add_u32 v3, s21, v3\n    v_mul_u32_u24 v3, {stride}, v3\n"
    s += f"""
    s_mov_b32 s27, 0
3:
    s_memrealtime s[28:29]
    s_waitcnt lgkmcnt(0)
    s_mul_i32 s19, s27, 16384
    s_and_b32 s21, s16, 3
    s_or_b32 s21, s21, s20
    s_cmp_eq_u32 s21, 0
    s_cbranch_scc0 6f
    buffer_store_dwordx2 v[8:9], v2, s[8:11], s23 offen sc1
    s_waitcnt vmcnt(0)
    s_mov_b64 exec, 1
    buffer_store_dword v5, v4, s[40:43], s19 offen sc1
    s_mov_b64 exec, -1
6:
    s_mov_b32 s34, 20000
"""
    if pollmode == "wg": s += "    s_cmp_eq_u32 s20, 7\n    s_cbranch_scc0 5f\n"
    s += f"""
4:
    buffer_load_dword v6, v3, s[40:43], s19 offen sc1
    s_waitcnt vmcnt(0)
    v_cmp_ne_u32 vcc, 1, v6
    s_cbranch_vccz 5f
    {'s_sleep %d' % sleep if sleep else ''}
    s_sub_u32 s34, s34, 1
    s_cbranch_scc0 4b
5:
    s_barrier
    s_memrealtime s[30:31]
    s_waitcnt lgkmcnt(0)
    v_mov_b32 v16, s28
    v_mov_b32 v17, s30
    s_lshl_b32 s19, s27, 3
    s_lshl_b32 s22, s2, 8
    s_add_u32 s19, s19, s22
    v_mov_b32 v7, s19
    s_cmp_eq_u32 s20, 3
    s_cbranch_scc0 7f
    s_mov_b64 exec, 1
    buffer_store_dwordx2 v[16:17], v7, s[12:15], 0 offen
    s_mov_b64 exec, -1
7:
    s_add_u32 s23, s23, 0x100000
    s_add_u32 s27, s27, 1
    s_cmp_lg_u32 s27, {rounds}
    s_cbranch_scc1 3b
    s_waitcnt vmcnt(0)
    s_endpgm
"""
    return s

def body_s(stride, glc="glc"):
    b = body(stride, "wave")
    i0 = b.index("4:\n    buffer_load_dword v6"); i1 = b.index("5:\n    s_barrier")
    poll = "    s_lshl_b32 s21, s20, 3\n    s_mul_i32 s21, s21, %d\n    s_add_u32 s21, s21, s19\n    s_add_u32 s44, s36, s21\n    s_addc_u32 s45, s37, 0\n4:\n" % stride
    for k in range(8): poll += f"    s_load_dword s{48+k}, s[44:45], {k*stride} {glc}\n"
    poll += "    s_waitcnt lgkmcnt(0)\n"
    for k in range(1,8): poll += f"    s_min_u32 s48, s48, s{48+k}\n"
    poll += "    s_cmp_ge_u32 s48, 1\n    s_cbranch_scc1 5f\n    s_sub_u32 s34, s34, 1\n    s_cbranch_scc0 4b\n"
    return b[:i0] + poll + b[i1:]
K=[]; meta=[]
for stride in (256,):
    K.append((f"e2_s{stride}_wave",body(stride,"wave"),32,32)); meta.append((K[-1][0],8,0))
    K.append((f"e2_s{stride}_wg",body(stride,"wg"),32,32)); meta.append((K[-1][0],8,0))
    K.append((f"e2_s{stride}_smem",body_s(stride).replace("s_mov_b32 s34, 20000","s_mov_b32 s34, 300"),32,32)); meta.append((K[-1][0],8,0))
build(K,"e2"); json.dump(meta,open("e2.json","w"))
```

```python
import json
from mblib import build
def k(name, st, cold):
    s = """
    s_load_dwordx2 s[4:5], s[0:1], 8
    s_load_dwordx2 s[6:7], s[0:1], 0
    s_waitcnt lgkmcnt(0)
    s_mov_b32 s8, s4
    s_mov_b32 s9, s5
    s_mov_b32 s10, 0x100000
    s_mov_b32 s11, 0x20000
    s_mov_b32 s40, s6
    s_mov_b32 s41, s7
    s_mov_b32 s42, 0x10000000
    s_mov_b32 s43, 0x20000
    v_lshrrev_b32 v1, 6, v0
    v_and_b32 v0, 63, v0
    v_readfirstlane_b32 s20, v1
    v_lshlrev_b32 v1, 4, v0
    v_lshlrev_b32 v2, 3, v0
    s_lshl_b32 s22, s2, 12
    s_add_u32 s22, s22, 0x800000
"""
    for i in range(16): s += f"    s_mov_b32 s23, {4096*(i//4)}\n    buffer_load_dwordx4 v[{8+4*i}:{11+4*i}], v1, s[40:43], s23 offen offset:{1024*(i%4)} sc1\n"
    s += "    s_waitcnt vmcnt(0)\n    s_barrier\n    s_cmp_eq_u32 s20, 0\n    s_cbranch_scc0 1f\n"
    if st is not None: s += f"    buffer_store_dwordx2 v[8:9], v2, s[40:43], s22 offen {st}\n"
    s += "    s_barrier\n    s_waitcnt vmcnt(0)\n    s_endpgm\n1:\n    s_barrier\n    s_memtime s[12:13]\n    s_waitcnt lgkmcnt(0)\n"
    for i in range(16): s += f"    s_mov_b32 s23, {4096*(i//4)}\n    buffer_load_dwordx4 v[{8+4*i}:{11+4*i}], v1, s[40:43], s23 offen offset:{1024*(i%4)} {cold}\n"
    s += """    s_waitcnt vmcnt(0)
    s_memtime s[14:15]
    s_waitcnt lgkmcnt(0)
    s_sub_u32 s14, s14, s12
    v_mov_b32 v2, s14
    s_lshl_b32 s21, s2, 2
    v_mov_b32 v3, s21
    s_mov_b64 exec, 1
    buffer_store_dword v2, v3, s[8:11], 0 offen
    s_waitcnt vmcnt(0)
    s_endpgm
"""
    return (name, s, 80, 80)
K=[k("none_pl",None,""), k("plain_pl","",""), k("sc1_pl","sc1",""), k("sc1_sc1","sc1","sc1"), k("sc1_nt","sc1","nt"), k("sc01_pl","sc0 sc1",""), k("ntsc1_pl","sc1 nt","")]
build(K,"st"); json.dump([x[0] for x in K],open("st.json","w"))
```

```python
import json
from mblib import build
def k(name, pat, op="load", lds=True):
    s = """
    s_load_dwordx2 s[4:5], s[0:1], 8
    s_load_dwordx2 s[6:7], s[0:1], 0
    s_waitcnt lgkmcnt(0)
    s_mov_b32 s8, s4
    s_mov_b32 s9, s5
    s_mov_b32 s10, 0x100000
    s_mov_b32 s11, 0x20000
    s_mov_b32 s40, s6
    s_mov_b32 s41, s7
    s_mov_b32 s42, 0x10000000
    s_mov_b32 s43, 0x20000
    v_lshrrev_b32 v1, 6, v0
    v_and_b32 v0, 63, v0
    v_readfirstlane_b32 s20, v1
""" + pat + """
    s_lshl_b32 s22, s20, 16
    s_lshl_b32 m0, s20, 12
    s_mov_b32 s24, 0
2:
    s_barrier
    s_memtime s[12:13]
    s_waitcnt lgkmcnt(0)
"""
    for i in range(16):
        s += f"    s_add_u32 s23, s22, {4096*i}\n"
        s += "    buffer_load_dwordx4 v2, s[40:43], s23 offen sc1 lds\n" if op == "load" else f"    buffer_load_{op} v[8:9], v2, s[40:43], s23 offen sc1\n" if op == "dwordx2" else "    buffer_store_dwordx4 v[8:11], v2, s[40:43], s23 offen\n"
    s += """    s_waitcnt vmcnt(0)
    s_barrier
    s_memtime s[14:15]
    s_waitcnt lgkmcnt(0)
    s_add_u32 s24, s24, 1
    s_cmp_lt_u32 s24, 3
    s_cbranch_scc1 2b
    s_sub_u32 s14, s14, s12
    v_mov_b32 v2, s14
    s_lshl_b32 s21, s2, 2
    v_mov_b32 v3, s21
    s_mov_b64 exec, 1
    buffer_store_dword v2, v3, s[8:11], 0 offen
    s_waitcnt vmcnt(0)
    s_endpgm
"""
    return (name, s, 32, 32)
lin="    v_lshlrev_b32 v2, 4, v0\n"
rows4="    v_lshrrev_b32 v3, 4, v0\n    v_and_b32 v2, 15, v0\n    v_lshlrev_b32 v2, 4, v2\n    v_lshl_add_u32 v2, v3, 10, v2\n"
x64="    v_lshrrev_b32 v3, 4, v0\n    v_bfe_u32 v4, v0, 2, 2\n    v_xor_b32 v4, v4, v3\n    v_lshlrev_b32 v4, 6, v4\n    v_lshl_add_u32 v4, v3, 10, v4\n    v_and_b32 v2, 3, v0\n    v_lshl_add_u32 v2, v2, 4, v4\n"
x64s=x64+"    v_xor_b32 v2, 32, v2\n"
x32="    v_lshrrev_b32 v3, 4, v0\n    v_bfe_u32 v4, v0, 1, 3\n    v_xor_b32 v4, v4, v3\n    v_lshlrev_b32 v4, 5, v4\n    v_lshl_add_u32 v4, v3, 10, v4\n    v_and_b32 v2, 1, v0\n    v_lshl_add_u32 v2, v2, 4, v4\n"
xpat="    v_and_b32 v3, 15, v0\n    v_lshrrev_b32 v4, 4, v0\n    v_lshlrev_b32 v2, 8, v3\n    v_lshl_add_u32 v2, v4, 4, v2\n"
upat="    v_lshrrev_b32 v3, 2, v0\n    v_and_b32 v4, 3, v0\n    v_lshlrev_b32 v2, 8, v3\n    v_lshl_add_u32 v2, v4, 4, v2\n"
lin8="    v_lshlrev_b32 v2, 3, v0\n"
K=[k("linear",lin),k("rows4",rows4),k("xor64",x64),k("xor64swap",x64s),k("xor32",x32),k("xpat",xpat),k("upat",upat),k("lin_x2",lin8,"dwordx2"),k("store_lin",lin,"store")]
build(K,"ta"); json.dump([x[0] for x in K],open("ta.json","w"))
```
